```python
import torch

def _softmax(x, axis=-1):
    return torch.softmax(x, dim=axis)
def _gelu(x):
    return torch.nn.functional.gelu(x, approximate="tanh")
def _silu(x):
    return torch.nn.functional.silu(x)
def _sigmoid(x):
    return torch.sigmoid(x)
def _layernorm(x, axis=-1, eps=1e-5):
    m = x.mean(dim=axis, keepdim=True)
    v = x.var(dim=axis, keepdim=True, unbiased=False)
    return (x - m) / torch.sqrt(v + eps)
def _scatter_add(tgt, idx, src, axis=0):
    return tgt.clone().index_add_(axis, idx, src)
def _segment_sum(src, seg, n):
    out = torch.zeros((n,) + src.shape[1:], dtype=src.dtype)
    return out.index_add_(0, seg, src)
def _pad(x, pw):
    flat = tuple(v for pair in reversed(pw) for v in pair)
    return torch.nn.functional.pad(x, flat)

kernel_name = 'standalone__glu_gated_glu__decode'

def setup_inputs():

    _w = (lambda a: (lambda t: t.to(torch.bfloat16) if t.is_floating_point() else t)(torch.as_tensor(a)))
    B, S, D, F = 1, 1, 1024, 3584
    return {
        "x": _w((lambda *s: torch.randn(*s, dtype=torch.bfloat16) * 0.1)(B, S, D)),
        "w_gate": _w((lambda *s: torch.randn(*s, dtype=torch.bfloat16) * 0.1)(D, F)),
        "w_up": _w((lambda *s: torch.randn(*s, dtype=torch.bfloat16) * 0.05)(D, F)),
        "w_down": _w((lambda *s: torch.randn(*s, dtype=torch.bfloat16) * 0.05)(F, D)),
    }

def reference(x, w_gate, w_up, w_down):
    g = torch.einsum("bsd,df->bsf", x, w_gate)
    u = torch.einsum("bsd,df->bsf", x, w_up)
    h = _sigmoid(g) * u
    return torch.einsum("bsf,fd->bsd", h, w_down)
```

```python
import sys

HEADER = open('standalone__glu_gated_glu__decode.s.ref').read().split('; Override launch')[0]

def gen(opts):
    L = []
    e = L.append
    NCONS = 32
    NPROD = 224
    wpol = opts.get('wpol', '')
    dpol = opts.get('dpol', '')
    e(HEADER.rstrip())
    e('; @launch grid=(256,1,1) block=(256,1,1) lds=1024')
    e('.amdgcn_target "amdgcn-amd-amdhsa--gfx950"')
    e('.text')
    e('.globl standalone__glu_gated_glu__decode_kernel')
    e('.p2align 8')
    e('.type standalone__glu_gated_glu__decode_kernel,@function')
    e('standalone__glu_gated_glu__decode_kernel:')
    e('    s_load_dwordx8 s[8:15], s[0:1], 0')
    e('    s_load_dwordx4 s[16:19], s[0:1], 32')
    e('    s_load_dwordx2 s[20:21], s[0:1], 48    ; ws')
    e('    s_cmp_ge_u32 s2, 256')
    e('    s_cbranch_scc1 L_end')
    e('    s_cmp_lt_u32 s2, %d' % NCONS)
    e('    s_cbranch_scc1 L_consumer')
    e('    s_sub_u32 s3, s2, %d                 ; p' % NCONS)
    e('    s_and_b32 s4, s3, 7                    ; xcd')
    e('    s_lshr_b32 s5, s3, 3                   ; slot 0..27')
    e('    s_lshr_b32 s6, s5, 2                   ; slot>>2')
    e('    s_and_b32 s5, s5, 3                    ; sub')
    e('    s_lshl_b32 s6, s6, 3')
    e('    s_add_u32 s6, s6, s4')
    e('    s_lshl_b32 s6, s6, 2')
    e('    s_add_u32 s6, s6, s5                   ; chunk 0..223')
    e('    s_lshl_b32 s7, s6, 5')
    e('    v_lshrrev_b32 v1, 1, v0')
    e('    v_and_b32 v3, 1, v0')
    e('    v_mul_u32_u24 v2, 57344, v1')
    e('    v_lshlrev_b32 v3, 4, v3')
    e('    v_add3_u32 v2, v2, v3, s7')
    e('    v_lshlrev_b32 v1, 4, v1')
    for i in range(1, 8):
        e('    v_add_u32 v%d, %d, v2' % (2 + i, 7168 * i))
    e('    v_and_b32 v10, 32, v0')
    e('    v_lshlrev_b32 v10, 9, v10              ; (l>>5)*8*2048')
    e('    v_lshrrev_b32 v11, 6, v0')
    e('    v_lshlrev_b32 v11, 9, v11              ; w*512')
    e('    v_and_b32 v12, 31, v0')
    e('    v_lshlrev_b32 v12, 4, v12')
    e('    v_add3_u32 v10, v10, v11, v12')
    e('    s_lshl_b32 s22, s6, 15                 ; chunk*16*2048')
    e('    s_add_u32 s22, s22, 4096')
    e('    v_add_u32 v10, s22, v10')
    e('    v_add_u32 v11, 8192, v10')
    e('    s_waitcnt lgkmcnt(0)')
    e('    global_load_dwordx4 v[12:15], v1, s[8:9]')
    for i in range(8):
        e('    global_load_dwordx4 v[%d:%d], v%d, s[10:11] %s' % (16 + 8 * i, 19 + 8 * i, 2 + i, wpol))
        e('    global_load_dwordx4 v[%d:%d], v%d, s[12:13] %s' % (20 + 8 * i, 23 + 8 * i, 2 + i, wpol))
    for i in range(8):
        e('    global_load_dwordx4 v[%d:%d], v%d, s[14:15] offset:%d %s' % (80 + 4 * i, 83 + 4 * i, 10 + i // 4, (i % 4) * 2048 - 4096, dpol))
    for j in range(16):
        e('    v_mov_b32 v%d, 0' % (112 + j))
    e('    s_mov_b32 s24, 0x05040100')
    e('    s_mov_b32 s25, 0x07060302')
    e('    v_lshrrev_b32 v1, 3, v0')
    e('    v_mul_u32_u24 v1, %d, v1' % (NPROD * 128))
    e('    v_and_b32 v2, 7, v0')
    e('    v_lshlrev_b32 v2, 4, v2')
    e('    s_lshl_b32 s23, s6, 7')
    e('    v_add3_u32 v1, v1, v2, s23')
    for k in range(4):
        e('    s_waitcnt vmcnt(%d)' % (25 - 1 - 4 * (k + 1)))
        if k == 0:
            e('    s_load_dword s26, s[18:19], 0')
        for m in range(2):
            a = 16 + 8 * (2 * k) + 4 * m
            b = 16 + 8 * (2 * k + 1) + 4 * m
            acc = 112 + 8 * m
            for j in range(4):
                e('    v_perm_b32 v%d, v%d, v%d, s24' % (2 + 2 * j, b + j, a + j))
                e('    v_perm_b32 v%d, v%d, v%d, s25' % (3 + 2 * j, b + j, a + j))
            for j in range(8):
                e('    v_dot2c_f32_bf16 v%d, v%d, v%d' % (acc + j, 2 + j, 12 + k))
    e('    s_nop 2')
    for j in range(8):
        e('    v_permlane32_swap_b32 v%d, v%d' % (112 + j, 120 + j))
    e('    s_nop 1')
    for j in range(8):
        e('    v_add_f32 v%d, v%d, v%d' % (112 + j, 112 + j, 120 + j))
    e('    s_nop 1')
    for j in range(4):
        e('    v_permlane16_swap_b32 v%d, v%d' % (112 + j, 116 + j))
    e('    s_nop 1')
    for j in range(4):
        e('    v_add_f32 v%d, v%d, v%d' % (112 + j, 112 + j, 116 + j))
    for sh in (8, 4, 2):
        e('    s_nop 1')
        for j in range(4):
            e('    v_add_f32_dpp v%d, v%d, v%d row_ror:%d row_mask:0xf bank_mask:0xf' % (112 + j, 112 + j, 112 + j, sh))
    e('    v_and_b32 v2, 1, v0')
    e('    v_lshlrev_b32 v2, 7, v2                ; hf*8*16')
    e('    v_and_b32 v3, 16, v0')
    e('    v_lshlrev_b32 v3, 2, v3                ; (rho&1)*4*16')
    e('    v_and_b32 v4, 32, v0')
    e('    v_lshlrev_b32 v4, 3, v4                ; mat*256')
    e('    v_add3_u32 v2, v2, v3, v4')
    e('    v_lshrrev_b32 v3, 6, v0')
    e('    v_lshl_add_u32 v2, v3, 2, v2')
    for j in range(4):
        e('    ds_write_b32 v2, v%d offset:%d' % (112 + j, 16 * j))
    e('    v_and_b32 v3, 15, v0')
    e('    v_lshlrev_b32 v4, 4, v3')
    e('    s_waitcnt lgkmcnt(0)')
    e('    s_barrier')
    e('    ds_read_b128 v[112:115], v4')
    e('    ds_read_b128 v[116:119], v4 offset:256')
    e('    v_lshrrev_b32 v5, 6, v0')
    e('    v_lshlrev_b32 v5, 5, v5')
    e('    v_lshl_add_u32 v6, v3, 1, v5')
    e('    v_and_b32 v7, 32, v0')
    e('    v_lshrrev_b32 v7, 1, v7')
    e('    v_add_u32 v7, v7, v5')
    e('    s_mov_b32 s27, 0xbfb8aa3b              ; -log2(e)')
    e('    s_waitcnt lgkmcnt(0)')
    e('    v_add_f32 v112, v112, v113')
    e('    v_add_f32 v114, v114, v115')
    e('    v_add_f32 v116, v116, v117')
    e('    v_add_f32 v118, v118, v119')
    e('    v_add_f32 v112, v112, v114             ; g')
    e('    v_add_f32 v116, v116, v118             ; u')
    e('    v_cvt_pk_bf16_f32 v112, v112, v116')
    e('    v_lshlrev_b32 v113, 16, v112           ; g (rounded)')
    e('    v_and_b32 v116, 0xffff0000, v112       ; u (rounded)')
    e('    v_mul_f32 v113, s27, v113')
    e('    v_exp_f32 v113, v113')
    e('    s_nop 0')
    e('    v_add_f32 v113, 1.0, v113')
    e('    v_rcp_f32 v113, v113')
    e('    s_nop 0')
    e('    v_cvt_pk_bf16_f32 v113, v113, v113')
    e('    v_lshlrev_b32 v113, 16, v113')
    e('    v_mul_f32 v113, v113, v116')
    e('    v_cvt_pk_bf16_f32 v113, v113, v113     ; h')
    e('    ds_write_b16 v6, v113 offset:512')
    e('    s_waitcnt lgkmcnt(0)')
    e('    ds_read_b128 v[12:15], v7 offset:512')
    for j in range(8):
        e('    v_mov_b32 v%d, 0' % (112 + j))
    for k in range(4):
        e('    s_waitcnt vmcnt(%d)%s' % (8 - 2 * (k + 1), ' lgkmcnt(0)' if k == 0 else ''))
        a = 80 + 8 * k
        b = a + 4
        for j in range(4):
            e('    v_perm_b32 v%d, v%d, v%d, s24' % (2 + 2 * j, b + j, a + j))
            e('    v_perm_b32 v%d, v%d, v%d, s25' % (3 + 2 * j, b + j, a + j))
        for j in range(8):
            e('    v_dot2c_f32_bf16 v%d, v%d, v%d' % (112 + j, 2 + j, 12 + k))
    e('    s_nop 2')
    for j in range(4):
        e('    v_permlane32_swap_b32 v%d, v%d' % (112 + j, 116 + j))
    e('    s_nop 1')
    for j in range(4):
        e('    v_add_f32 v%d, v%d, v%d' % (112 + j, 112 + j, 116 + j))
    for j in range(4):
        e('    v_min_u32 v%d, -2, v%d' % (112 + j, 112 + j))
    e('    global_store_dwordx4 v1, v[112:115], s[20:21] sc1')
    e('    s_cmp_eq_u32 s26, %d' % NCONS)
    e('    s_cbranch_scc1 L_end')
    e('    v_mov_b32 v2, 0')
    e('L_pslow:')
    e('    global_load_dword v3, v2, s[18:19] sc1')
    e('    s_waitcnt vmcnt(0)')
    e('    v_readfirstlane_b32 s26, v3')
    e('    s_nop 3')
    e('    s_cmp_eq_u32 s26, %d' % NCONS)
    e('    s_cbranch_scc1 L_prepub')
    e('    s_sleep 2')
    e('    s_branch L_pslow')
    e('L_prepub:')
    e('    global_store_dwordx4 v1, v[112:115], s[20:21] sc1')
    e('    s_endpgm')
    e('L_consumer:')
    e('    v_lshrrev_b32 v2, 6, v0')
    e('    v_mul_u32_u24 v1, 7168, v2')
    e('    v_and_b32 v3, 63, v0')
    e('    v_lshlrev_b32 v3, 4, v3')
    e('    s_mul_i32 s3, s2, %d' % (NPROD * 128))
    e('    s_add_u32 s3, s3, 3072')
    e('    v_add3_u32 v1, v1, v3, s3')
    for j in range(4):
        e('    v_mov_b32 v%d, -1' % (4 + j))
    e('    s_waitcnt lgkmcnt(0)')
    for i in range(7):
        e('    global_store_dwordx4 v1, v[4:7], s[20:21] offset:%d sc1' % (i * 1024 - 3072))
    e('    v_and_b32 v3, 7, v0')
    e('    v_lshlrev_b32 v3, 6, v3')
    e('    v_and_b32 v4, 48, v0                   ; j*16')
    e('    v_lshlrev_b32 v2, 2, v2')
    e('    v_add3_u32 v2, v2, v3, v4')
    e('    s_waitcnt vmcnt(0)')
    e('    s_barrier')
    e('    v_cmp_eq_u32 vcc, 0, v0')
    e('    s_and_saveexec_b64 s[4:5], vcc')
    e('    s_cbranch_execz L_cpoll0')
    e('    v_mov_b32 v3, 0')
    e('    v_mov_b32 v4, 1')
    e('    global_atomic_add v3, v4, s[18:19] sc1')
    e('L_cpoll0:')
    e('    s_mov_b64 exec, s[4:5]')
    e('L_cpoll:')
    for i in range(7):
        e('    global_load_dwordx4 v[%d:%d], v1, s[20:21] offset:%d sc1' % (8 + 4 * i, 11 + 4 * i, i * 1024 - 3072))
    e('    s_waitcnt vmcnt(0)')
    e('    v_max3_u32 v3, v8, v9, v10')
    for r in range(11, 35, 2):
        e('    v_max3_u32 v3, v3, v%d, v%d' % (r, r + 1))
    e('    v_max_u32 v3, v3, v35')
    e('    v_cmp_eq_u32 vcc, -1, v3')
    e('    s_cbranch_vccz L_cgot')
    e('    s_sleep %d' % opts.get('csleep', 2))
    e('    s_branch L_cpoll')
    e('L_cgot:')
    for i in range(1, 7):
        for j in range(4):
            e('    v_add_f32 v%d, v%d, v%d' % (8 + j, 8 + j, 8 + 4 * i + j))
    e('    s_nop 1')
    e('    v_permlane32_swap_b32 v8, v10')
    e('    v_permlane32_swap_b32 v9, v11')
    e('    s_nop 1')
    e('    v_add_f32 v8, v8, v10')
    e('    v_add_f32 v9, v9, v11')
    e('    s_nop 1')
    e('    v_permlane16_swap_b32 v8, v9')
    e('    s_nop 1')
    e('    v_add_f32 v8, v8, v9')
    e('    s_nop 1')
    e('    v_add_f32_dpp v8, v8, v8 row_ror:8 row_mask:0xf bank_mask:0xf')
    e('    ds_write_b32 v2, v8')
    e('    v_lshlrev_b32 v3, 5, v0')
    e('    s_lshr_b32 s3, s2, 3')
    e('    s_lshl_b32 s3, s3, 9')
    e('    s_and_b32 s4, s2, 3')
    e('    s_lshl_b32 s4, s4, 7')
    e('    s_add_u32 s3, s3, s4')
    e('    s_and_b32 s4, s2, 4')
    e('    s_lshl_b32 s4, s4, 1')
    e('    s_add_u32 s3, s3, s4')
    e('    v_lshrrev_b32 v4, 1, v0')
    e('    v_lshlrev_b32 v4, 4, v4')
    e('    v_and_b32 v5, 1, v0')
    e('    v_lshlrev_b32 v5, 2, v5')
    e('    v_add3_u32 v4, v4, v5, s3')
    e('    s_waitcnt lgkmcnt(0)')
    e('    s_barrier')
    e('    v_cmp_gt_u32 vcc, 16, v0')
    e('    s_and_saveexec_b64 s[4:5], vcc')
    e('    s_cbranch_execz L_end')
    e('    ds_read_b128 v[8:11], v3')
    e('    ds_read_b128 v[12:15], v3 offset:16')
    e('    s_waitcnt lgkmcnt(0)')
    e('    v_add_f32 v8, v8, v9')
    e('    v_add_f32 v10, v10, v11')
    e('    v_add_f32 v12, v12, v13')
    e('    v_add_f32 v14, v14, v15')
    e('    v_add_f32 v8, v8, v10')
    e('    v_add_f32 v12, v12, v14')
    e('    v_cvt_pk_bf16_f32 v8, v8, v12')
    e('    global_store_dword v4, v8, s[16:17]')
    e('L_end:')
    e('    s_endpgm')
    e('.section .rodata,"a"')
    e('.p2align 6')
    e('.amdhsa_kernel standalone__glu_gated_glu__decode_kernel')
    e('  .amdhsa_next_free_vgpr 128')
    e('  .amdhsa_next_free_sgpr 32')
    e('  .amdhsa_accum_offset 128')
    e('  .amdhsa_group_segment_fixed_size 0')
    e('  .amdhsa_kernarg_size 56')
    e('  .amdhsa_user_sgpr_count 2')
    e('  .amdhsa_user_sgpr_kernarg_segment_ptr 1')
    e('  .amdhsa_system_sgpr_workgroup_id_x 1')
    e('  .amdhsa_float_denorm_mode_32 3')
    e('.end_amdhsa_kernel')
    return '\n'.join(L) + '\n'

if __name__ == '__main__':
    out = sys.argv[1]
    opts = {}
    for a in sys.argv[2:]:
        k, v = a.split('=')
        try:
            v = int(v)
        except ValueError:
            pass
        opts[k] = v
    open(out, 'w').write(gen(opts))
```

```python
import sys

HEADER = open('standalone__glu_gated_glu__decode.s.ref').read().split('; Override launch')[0]

def gen(opts):
    L = []
    e = L.append
    NCONS = 32
    NPROD = 224
    wpol = opts.get('wpol', '')
    dpol = opts.get('dpol', '')
    STAMP = opts.get('stamp', 0)
    def stamp(k):
        if STAMP:
            e('    s_memrealtime s[%d:%d]' % (40 + 2 * k, 41 + 2 * k))
    def dump(n):
        if STAMP:
            e('    s_mov_b64 exec, -1')
            e('    v_cmp_eq_u32 vcc, 0, v0')
            e('    s_and_saveexec_b64 s[4:5], vcc')
            e('    s_cbranch_execz L_end')
            e('    s_mul_i32 s3, s2, %d' % (STAMP * 4))
            e('    s_add_u32 s3, s3, 0x8000000')
            e('    v_mov_b32 v2, s3')
            e('    s_waitcnt lgkmcnt(0)')
            for k in range(STAMP):
                e('    v_mov_b32 v3, s%d' % (40 + 2 * min(k, n)))
                e('    global_store_dword v2, v3, s[20:21] offset:%d' % (4 * k))
    e(HEADER.rstrip())
    e('; @launch grid=(256,1,1) block=(256,1,1) lds=1024')
    e('.amdgcn_target "amdgcn-amd-amdhsa--gfx950"')
    e('.text')
    e('.globl standalone__glu_gated_glu__decode_kernel')
    e('.p2align 8')
    e('.type standalone__glu_gated_glu__decode_kernel,@function')
    e('standalone__glu_gated_glu__decode_kernel:')
    stamp(0)
    if opts.get('diag','') == 'amp':
        e('    s_memrealtime s[34:35]')
    e('    s_load_dwordx8 s[8:15], s[0:1], 0')
    e('    s_load_dwordx4 s[16:19], s[0:1], 32')
    e('    s_load_dwordx2 s[20:21], s[0:1], 48    ; ws')
    e('    s_cmp_ge_u32 s2, 256')
    e('    s_cbranch_scc1 L_end')
    e('    s_cmp_lt_u32 s2, %d' % NCONS)
    e('    s_cbranch_scc1 L_consumer')
    e('    s_sub_u32 s3, s2, %d                 ; p' % NCONS)
    e('    s_and_b32 s4, s3, 7                    ; xcd')
    e('    s_lshr_b32 s5, s3, 3                   ; slot 0..27')
    e('    s_lshr_b32 s6, s5, 2                   ; slot>>2')
    e('    s_and_b32 s5, s5, 3                    ; sub')
    e('    s_lshl_b32 s6, s6, 3')
    e('    s_add_u32 s6, s6, s4')
    e('    s_lshl_b32 s6, s6, 2')
    e('    s_add_u32 s6, s6, s5                   ; chunk 0..223')
    e('    s_lshl_b32 s7, s6, 5')
    e('    v_lshrrev_b32 v1, 1, v0')
    e('    v_and_b32 v3, 1, v0')
    e('    v_mul_u32_u24 v2, 57344, v1')
    e('    v_lshlrev_b32 v3, 4, v3')
    e('    v_add3_u32 v2, v2, v3, s7')
    e('    v_lshlrev_b32 v1, 4, v1')
    for i in range(1, 8):
        e('    v_add_u32 v%d, %d, v2' % (2 + i, 7168 * i))
    e('    v_and_b32 v10, 32, v0')
    e('    v_lshlrev_b32 v10, 9, v10              ; (l>>5)*8*2048')
    e('    v_lshrrev_b32 v11, 6, v0')
    e('    v_lshlrev_b32 v11, 9, v11              ; w*512')
    e('    v_and_b32 v12, 31, v0')
    e('    v_lshlrev_b32 v12, 4, v12')
    e('    v_add3_u32 v10, v10, v11, v12')
    e('    s_lshl_b32 s22, s6, 15                 ; chunk*16*2048')
    e('    s_add_u32 s22, s22, 4096')
    e('    v_add_u32 v10, s22, v10')
    e('    v_add_u32 v11, 8192, v10')
    e('    s_waitcnt lgkmcnt(0)')
    stamp(1)
    e('    global_load_dwordx4 v[12:15], v1, s[8:9]')
    for i in range(8):
        e('    global_load_dwordx4 v[%d:%d], v%d, s[10:11] %s' % (16 + 8 * i, 19 + 8 * i, 2 + i, wpol))
        e('    global_load_dwordx4 v[%d:%d], v%d, s[12:13] %s' % (20 + 8 * i, 23 + 8 * i, 2 + i, wpol))
    for i in range(8):
        e('    global_load_dwordx4 v[%d:%d], v%d, s[14:15] offset:%d %s' % (80 + 4 * i, 83 + 4 * i, 10 + i // 4, (i % 4) * 2048 - 4096, dpol))
    stamp(2)
    for j in range(16):
        e('    v_mov_b32 v%d, 0' % (112 + j))
    e('    s_mov_b32 s24, 0x05040100')
    e('    s_mov_b32 s25, 0x07060302')
    e('    v_lshrrev_b32 v1, 3, v0')
    e('    v_mul_u32_u24 v1, %d, v1' % (NPROD * 128))
    e('    v_and_b32 v2, 7, v0')
    e('    v_lshlrev_b32 v2, 4, v2')
    e('    s_lshl_b32 s23, s6, 7')
    e('    v_add3_u32 v1, v1, v2, s23')
    for k in range(4):
        e('    s_waitcnt vmcnt(%d)' % (25 - 1 - 4 * (k + 1)))
        if k == 0:
            stamp(3)
        if k == 3:
            stamp(4)
        if k == 0:
            e('    s_load_dword s26, s[18:19], 0')
        for m in range(2):
            a = 16 + 8 * (2 * k) + 4 * m
            b = 16 + 8 * (2 * k + 1) + 4 * m
            acc = 112 + 8 * m
            for j in range(4):
                e('    v_perm_b32 v%d, v%d, v%d, s24' % (2 + 2 * j, b + j, a + j))
                e('    v_perm_b32 v%d, v%d, v%d, s25' % (3 + 2 * j, b + j, a + j))
            for j in range(8):
                e('    v_dot2c_f32_bf16 v%d, v%d, v%d' % (acc + j, 2 + j, 12 + k))
    e('    s_nop 2')
    for j in range(8):
        e('    v_permlane32_swap_b32 v%d, v%d' % (112 + j, 120 + j))
    e('    s_nop 1')
    for j in range(8):
        e('    v_add_f32 v%d, v%d, v%d' % (112 + j, 112 + j, 120 + j))
    e('    s_nop 1')
    for j in range(4):
        e('    v_permlane16_swap_b32 v%d, v%d' % (112 + j, 116 + j))
    e('    s_nop 1')
    for j in range(4):
        e('    v_add_f32 v%d, v%d, v%d' % (112 + j, 112 + j, 116 + j))
    for sh in (8, 4, 2):
        e('    s_nop 1')
        for j in range(4):
            e('    v_add_f32_dpp v%d, v%d, v%d row_ror:%d row_mask:0xf bank_mask:0xf' % (112 + j, 112 + j, 112 + j, sh))
    e('    v_and_b32 v2, 1, v0')
    e('    v_lshlrev_b32 v2, 7, v2                ; hf*8*16')
    e('    v_and_b32 v3, 16, v0')
    e('    v_lshlrev_b32 v3, 2, v3                ; (rho&1)*4*16')
    e('    v_and_b32 v4, 32, v0')
    e('    v_lshlrev_b32 v4, 3, v4                ; mat*256')
    e('    v_add3_u32 v2, v2, v3, v4')
    e('    v_lshrrev_b32 v3, 6, v0')
    e('    v_lshl_add_u32 v2, v3, 2, v2')
    for j in range(4):
        e('    ds_write_b32 v2, v%d offset:%d' % (112 + j, 16 * j))
    e('    v_and_b32 v3, 15, v0')
    e('    v_lshlrev_b32 v4, 4, v3')
    e('    s_waitcnt lgkmcnt(0)')
    e('    s_barrier')
    stamp(5)
    e('    ds_read_b128 v[112:115], v4')
    e('    ds_read_b128 v[116:119], v4 offset:256')
    e('    v_lshrrev_b32 v5, 6, v0')
    e('    v_lshlrev_b32 v5, 5, v5')
    e('    v_lshl_add_u32 v6, v3, 1, v5')
    e('    v_and_b32 v7, 32, v0')
    e('    v_lshrrev_b32 v7, 1, v7')
    e('    v_add_u32 v7, v7, v5')
    e('    s_mov_b32 s27, 0xbfb8aa3b              ; -log2(e)')
    e('    s_waitcnt lgkmcnt(0)')
    e('    v_add_f32 v112, v112, v113')
    e('    v_add_f32 v114, v114, v115')
    e('    v_add_f32 v116, v116, v117')
    e('    v_add_f32 v118, v118, v119')
    e('    v_add_f32 v112, v112, v114             ; g')
    e('    v_add_f32 v116, v116, v118             ; u')
    e('    v_cvt_pk_bf16_f32 v112, v112, v116')
    e('    v_lshlrev_b32 v113, 16, v112           ; g (rounded)')
    e('    v_and_b32 v116, 0xffff0000, v112       ; u (rounded)')
    e('    v_mul_f32 v113, s27, v113')
    e('    v_exp_f32 v113, v113')
    e('    s_nop 0')
    e('    v_add_f32 v113, 1.0, v113')
    e('    v_rcp_f32 v113, v113')
    e('    s_nop 0')
    e('    v_cvt_pk_bf16_f32 v113, v113, v113')
    e('    v_lshlrev_b32 v113, 16, v113')
    e('    v_mul_f32 v113, v113, v116')
    e('    v_cvt_pk_bf16_f32 v113, v113, v113     ; h')
    e('    ds_write_b16 v6, v113 offset:512')
    e('    s_waitcnt lgkmcnt(0)')
    e('    ds_read_b128 v[12:15], v7 offset:512')
    for j in range(8):
        e('    v_mov_b32 v%d, 0' % (112 + j))
    for k in range(4):
        e('    s_waitcnt vmcnt(%d)%s' % (8 - 2 * (k + 1), ' lgkmcnt(0)' if k == 0 else ''))
        if k == 0:
            stamp(6)
        if k == 3:
            stamp(7)
        a = 80 + 8 * k
        b = a + 4
        for j in range(4):
            e('    v_perm_b32 v%d, v%d, v%d, s24' % (2 + 2 * j, b + j, a + j))
            e('    v_perm_b32 v%d, v%d, v%d, s25' % (3 + 2 * j, b + j, a + j))
        for j in range(8):
            e('    v_dot2c_f32_bf16 v%d, v%d, v%d' % (112 + j, 2 + j, 12 + k))
    e('    s_nop 2')
    for j in range(4):
        e('    v_permlane32_swap_b32 v%d, v%d' % (112 + j, 116 + j))
    e('    s_nop 1')
    for j in range(4):
        e('    v_add_f32 v%d, v%d, v%d' % (112 + j, 112 + j, 116 + j))
    for j in range(4):
        e('    v_min_u32 v%d, -2, v%d' % (112 + j, 112 + j))
    e('    global_store_dwordx4 v1, v[112:115], s[20:21] sc1')
    stamp(8)
    if STAMP:
        e('    s_waitcnt vmcnt(0)')
    stamp(9)
    e('    s_cmp_eq_u32 s26, %d' % NCONS)
    e('    s_cbranch_scc1 L_pend')
    e('    v_mov_b32 v2, 0')
    e('L_pslow:')
    e('    global_load_dword v3, v2, s[18:19] sc1')
    e('    s_waitcnt vmcnt(0)')
    e('    v_readfirstlane_b32 s26, v3')
    e('    s_nop 3')
    e('    s_cmp_eq_u32 s26, %d' % NCONS)
    e('    s_cbranch_scc1 L_prepub')
    e('    s_sleep 2')
    e('    s_branch L_pslow')
    e('L_prepub:')
    e('    global_store_dwordx4 v1, v[112:115], s[20:21] sc1')
    e('L_pend:')
    stamp(10)
    dump(10)
    e('    s_endpgm')
    e('L_consumer:')
    e('    v_lshrrev_b32 v2, 6, v0')
    e('    v_mul_u32_u24 v1, 7168, v2')
    e('    v_and_b32 v3, 63, v0')
    e('    v_lshlrev_b32 v3, 4, v3')
    e('    s_mul_i32 s3, s2, %d' % (NPROD * 128))
    e('    s_add_u32 s3, s3, 3072')
    e('    v_add3_u32 v1, v1, v3, s3')
    for j in range(4):
        e('    v_mov_b32 v%d, -1' % (4 + j))
    e('    s_waitcnt lgkmcnt(0)')
    stamp(1)
    for i in range(7):
        e('    global_store_dwordx4 v1, v[4:7], s[20:21] offset:%d sc1' % (i * 1024 - 3072))
    e('    v_and_b32 v3, 7, v0')
    e('    v_lshlrev_b32 v3, 6, v3')
    e('    v_and_b32 v4, 48, v0                   ; j*16')
    e('    v_lshlrev_b32 v2, 2, v2')
    e('    v_add3_u32 v2, v2, v3, v4')
    e('    s_waitcnt vmcnt(0)')
    stamp(2)
    e('    s_barrier')
    stamp(3)
    e('    v_cmp_eq_u32 vcc, 0, v0')
    e('    s_and_saveexec_b64 s[4:5], vcc')
    e('    s_cbranch_execz L_cpoll0')
    e('    v_mov_b32 v3, 0')
    e('    v_mov_b32 v4, 1')
    e('    global_atomic_add v3, v4, s[18:19] sc1')
    e('L_cpoll0:')
    e('    s_mov_b64 exec, s[4:5]')
    e('L_cpoll:')
    stamp(4)
    for i in range(7):
        e('    global_load_dwordx4 v[%d:%d], v1, s[20:21] offset:%d sc1' % (8 + 4 * i, 11 + 4 * i, i * 1024 - 3072))
    e('    s_waitcnt vmcnt(0)')
    e('    v_max3_u32 v3, v8, v9, v10')
    for r in range(11, 35, 2):
        e('    v_max3_u32 v3, v3, v%d, v%d' % (r, r + 1))
    e('    v_max_u32 v3, v3, v35')
    e('    v_cmp_eq_u32 vcc, -1, v3')
    e('    s_cbranch_vccz L_cgot')
    e('    s_sleep %d' % opts.get('csleep', 2))
    e('    s_branch L_cpoll')
    e('L_cgot:')
    stamp(5)
    for i in range(1, 7):
        for j in range(4):
            e('    v_add_f32 v%d, v%d, v%d' % (8 + j, 8 + j, 8 + 4 * i + j))
    e('    s_nop 1')
    e('    v_permlane32_swap_b32 v8, v10')
    e('    v_permlane32_swap_b32 v9, v11')
    e('    s_nop 1')
    e('    v_add_f32 v8, v8, v10')
    e('    v_add_f32 v9, v9, v11')
    e('    s_nop 1')
    e('    v_permlane16_swap_b32 v8, v9')
    e('    s_nop 1')
    e('    v_add_f32 v8, v8, v9')
    e('    s_nop 1')
    e('    v_add_f32_dpp v8, v8, v8 row_ror:8 row_mask:0xf bank_mask:0xf')
    e('    ds_write_b32 v2, v8')
    e('    v_lshlrev_b32 v3, 5, v0')
    e('    s_lshr_b32 s3, s2, 3')
    e('    s_lshl_b32 s3, s3, 9')
    e('    s_and_b32 s4, s2, 3')
    e('    s_lshl_b32 s4, s4, 7')
    e('    s_add_u32 s3, s3, s4')
    e('    s_and_b32 s4, s2, 4')
    e('    s_lshl_b32 s4, s4, 1')
    e('    s_add_u32 s3, s3, s4')
    e('    v_lshrrev_b32 v4, 1, v0')
    e('    v_lshlrev_b32 v4, 4, v4')
    e('    v_and_b32 v5, 1, v0')
    e('    v_lshlrev_b32 v5, 2, v5')
    e('    v_add3_u32 v4, v4, v5, s3')
    e('    s_waitcnt lgkmcnt(0)')
    e('    s_barrier')
    stamp(6)
    e('    v_cmp_gt_u32 vcc, 16, v0')
    e('    s_and_saveexec_b64 s[4:5], vcc')
    e('    s_cbranch_execz L_end')
    e('    ds_read_b128 v[8:11], v3')
    e('    ds_read_b128 v[12:15], v3 offset:16')
    e('    s_waitcnt lgkmcnt(0)')
    e('    v_add_f32 v8, v8, v9')
    e('    v_add_f32 v10, v10, v11')
    e('    v_add_f32 v12, v12, v13')
    e('    v_add_f32 v14, v14, v15')
    e('    v_add_f32 v8, v8, v10')
    e('    v_add_f32 v12, v12, v14')
    e('    v_cvt_pk_bf16_f32 v8, v8, v12')
    e('    global_store_dword v4, v8, s[16:17]')
    diag = opts.get('diag', '')
    if diag == 'rt':
        e('    s_memrealtime s[30:31]')
        e('    s_waitcnt lgkmcnt(0)')
        e('    s_add_u32 s30, s30, %d' % opts.get('n', 2000))
        e('L_spin:')
        e('    s_memrealtime s[32:33]')
        e('    s_waitcnt lgkmcnt(0)')
        e('    s_sub_u32 s32, s32, s30')
        e('    s_cmp_lt_i32 s32, 0')
        e('    s_cbranch_scc1 L_spin')
    if diag == 'cyc':
        e('    s_memtime s[30:31]')
        e('    s_waitcnt lgkmcnt(0)')
        e('    s_add_u32 s30, s30, %d' % opts.get('n', 40000))
        e('L_spin:')
        e('    s_memtime s[32:33]')
        e('    s_waitcnt lgkmcnt(0)')
        e('    s_sub_u32 s32, s32, s30')
        e('    s_cmp_lt_i32 s32, 0')
        e('    s_cbranch_scc1 L_spin')
    if diag == 'amp':
        e('    s_memrealtime s[30:31]')
        e('    s_waitcnt lgkmcnt(0)')
        e('    s_sub_u32 s32, s30, s34')
        e('    s_lshl_b32 s32, s32, 2')
        e('    s_add_u32 s30, s30, s32')
        e('L_spin:')
        e('    s_memrealtime s[32:33]')
        e('    s_waitcnt lgkmcnt(0)')
        e('    s_sub_u32 s32, s32, s30')
        e('    s_cmp_lt_i32 s32, 0')
        e('    s_cbranch_scc1 L_spin')
    stamp(7)
    if STAMP:
        e('    s_waitcnt vmcnt(0)')
    stamp(8)
    dump(8)
    e('L_end:')
    e('    s_endpgm')
    e('.section .rodata,"a"')
    e('.p2align 6')
    e('.amdhsa_kernel standalone__glu_gated_glu__decode_kernel')
    e('  .amdhsa_next_free_vgpr 128')
    e('  .amdhsa_next_free_sgpr 72')
    e('  .amdhsa_accum_offset 128')
    e('  .amdhsa_group_segment_fixed_size 0')
    e('  .amdhsa_kernarg_size 56')
    e('  .amdhsa_user_sgpr_count 2')
    e('  .amdhsa_user_sgpr_kernarg_segment_ptr 1')
    e('  .amdhsa_system_sgpr_workgroup_id_x 1')
    e('  .amdhsa_float_denorm_mode_32 3')
    e('.end_amdhsa_kernel')
    return '\n'.join(L) + '\n'

if __name__ == '__main__':
    out = sys.argv[1]
    opts = {}
    for a in sys.argv[2:]:
        k, v = a.split('=')
        try:
            v = int(v)
        except ValueError:
            pass
        opts[k] = v
    open(out, 'w').write(gen(opts))
```
